```python
import torch

def _softmax(x, axis=-1):
    return torch.softmax(x, dim=axis)
def _gelu(x):
    return torch.nn.functional.gelu(x, approximate="tanh")
def _silu(x):
    return torch.nn.functional.silu(x)
def _sigmoid(x):
    return torch.sigmoid(x)
def _layernorm(x, axis=-1, eps=1e-5):
    m = x.mean(dim=axis, keepdim=True)
    v = x.var(dim=axis, keepdim=True, unbiased=False)
    return (x - m) / torch.sqrt(v + eps)
def _scatter_add(tgt, idx, src, axis=0):
    return tgt.clone().index_add_(axis, idx, src)
def _segment_sum(src, seg, n):
    out = torch.zeros((n,) + src.shape[1:], dtype=src.dtype)
    return out.index_add_(0, seg, src)
def _pad(x, pw):
    flat = tuple(v for pair in reversed(pw) for v in pair)
    return torch.nn.functional.pad(x, flat)

kernel_name = 'sequential_preLN__gqa_block_cached__glu_gated_geglu__decode'

def setup_inputs():

    _w = (lambda a: (lambda t: t.to(torch.bfloat16) if t.is_floating_point() else t)(torch.as_tensor(a)))
    def _A_setup():
        B, Sq, D = 1, 1, 640
        Hq, Hkv, Sk, Dh = 32, 32, 4096, 128
        assert Hq % Hkv == 0, (Hq, Hkv)
        return {
            "x": _w((lambda *s: torch.randn(*s, dtype=torch.bfloat16) * 0.05)(B, Sq, D)),
            "k_cache": _w((lambda *s: torch.randn(*s, dtype=torch.bfloat16) * 1.6)(B, Hkv, Sk, Dh)),
            "v_cache": _w((lambda *s: torch.randn(*s, dtype=torch.bfloat16) * 0.8)(B, Hkv, Sk, Dh)),
            "wq": _w((lambda *s: torch.randn(*s, dtype=torch.bfloat16) * 1.6)(D, Hq * Dh) * (D ** -0.5)),
            "wo": _w((lambda *s: torch.randn(*s, dtype=torch.bfloat16) * 0.8)(Hq * Dh, D) * ((Hq * Dh) ** -0.5)),
        }
    _A_in = _A_setup()

    def _B_setup():
        B, S, Dm, Df = 1, 1, 640, 1728
        return {
            "x": _w((lambda *s: torch.randn(*s, dtype=torch.bfloat16) * 0.05)(B, S, Dm)),
            "w_gate": _w((lambda *s: torch.randn(*s, dtype=torch.bfloat16) * 0.4)(Dm, Df) * (Dm ** -0.5)),
            "w_up": _w((lambda *s: torch.randn(*s, dtype=torch.bfloat16) * 0.4)(Dm, Df) * (Dm ** -0.5)),
            "w_down": _w((lambda *s: torch.randn(*s, dtype=torch.bfloat16) * 0.4)(Df, Dm) * (Df ** -0.5)),
        }
    _B_in = _B_setup()

    return {
        "A_x": _A_in["x"],
        "A_k_cache": _A_in["k_cache"],
        "A_v_cache": _A_in["v_cache"],
        "A_wq": _A_in["wq"],
        "A_wo": _A_in["wo"],
        "B_x": _B_in["x"],
        "B_w_gate": _B_in["w_gate"],
        "B_w_up": _B_in["w_up"],
        "B_w_down": _B_in["w_down"],
    }

def reference(A_x, A_k_cache, A_v_cache, A_wq, A_wo, B_x, B_w_gate, B_w_up, B_w_down):
    def _A_ref(x, k_cache, v_cache, wq, wo):
        B, Sq, D = x.shape
        Hq, Dh = 32, 128
        Hkv = k_cache.shape[1]
        rep = Hq // Hkv
        q = (lambda x, *d: x.permute(*d))((x @ wq).reshape(B, Sq, Hq, Dh), 0, 2, 1, 3)
        k = (lambda x, n, axis: torch.repeat_interleave(x, n, dim=axis))(k_cache, rep, axis=1)
        v = (lambda x, n, axis: torch.repeat_interleave(x, n, dim=axis))(v_cache, rep, axis=1)
        scores = torch.einsum("bhqd,bhkd->bhqk", q, k) * (Dh ** -0.5)
        p = _softmax(scores, axis=-1)
        o = torch.einsum("bhqk,bhkd->bhqd", p, v)
        return (lambda x, *d: x.permute(*d))(o, 0, 2, 1, 3).reshape(B, Sq, Hq * Dh) @ wo

    def _B_ref(x, w_gate, w_up, w_down):
        g = torch.einsum("bsd,df->bsf", x, w_gate)
        u = torch.einsum("bsd,df->bsf", x, w_up)
        h = _gelu(g) * u
        return torch.einsum("bsf,fd->bsd", h, w_down)

    x = A_x
    h = x + _A_ref(_layernorm(x, axis=-1), A_k_cache, A_v_cache, A_wq, A_wo)
    h2 = h + _B_ref(_layernorm(h, axis=-1), B_w_gate, B_w_up, B_w_down)
    return h2
```

```python
NAME = "sequential_preLN__gqa_block_cached__glu_gated_geglu__decode"
HEADER = """; Kernarg layout for this problem (96 bytes, ptrs only, base s[0:1]):
"""
class Asm:
    def __init__(self):
        self.lines = []
        self.nlab = 0
    def __call__(self, s):
        for l in s.split("\n"):
            l = l.rstrip()
            if l.strip():
                self.lines.append("    " + l.strip() if not l.strip().endswith(":") else l.strip())
    def label(self, base="L"):
        self.nlab += 1
        return f"{base}_{self.nlab}"
    def text(self):
        return "\n".join(self.lines) + "\n"

def wrap(body, grid, block, lds, vgpr, sgpr=102, accum=None, kname=None):
    kname = kname or NAME + "_kernel"
    accum = accum if accum is not None else ((min(vgpr,256) + 3) // 4) * 4
    return (HEADER + f"; @launch grid=({grid},1,1) block=({block},1,1) lds={lds}\n"
      + '.amdgcn_target "amdgcn-amd-amdhsa--gfx950"\n.text\n'
      + f".globl {kname}\n.p2align 8\n.type {kname},@function\n{kname}:\n"
      + body + "    s_endpgm\n"
      + '.section .rodata,"a"\n.p2align 6\n'
      + f".amdhsa_kernel {kname}\n  .amdhsa_next_free_vgpr {vgpr}\n  .amdhsa_next_free_sgpr {sgpr}\n"
      + f"  .amdhsa_accum_offset {accum}\n  .amdhsa_group_segment_fixed_size 0\n  .amdhsa_kernarg_size 96\n"
      + "  .amdhsa_user_sgpr_count 2\n  .amdhsa_user_sgpr_kernarg_segment_ptr 1\n  .amdhsa_system_sgpr_workgroup_id_x 1\n"
      + "  .amdhsa_float_denorm_mode_32 3\n"
      + ".end_amdhsa_kernel\n")
```

```python
import re
TRANS = ("v_exp_f32","v_log_f32","v_rcp_f32","v_rsq_f32","v_sqrt_f32","v_sin_f32","v_cos_f32","v_rcp_iflag_f32")
def regs(op):
    op = op.strip()
    op = re.sub(r"^-|^abs\(|\)$|^\|", "", op).strip("|")
    m = re.fullmatch(r"([vsa])(\d+)", op)
    if m: return {(m.group(1), int(m.group(2)))}
    m = re.fullmatch(r"([vsa])\[(\d+):(\d+)\]", op)
    if m: return {(m.group(1), i) for i in range(int(m.group(2)), int(m.group(3)) + 1)}
    if op == "vcc": return {("s", "vcc_lo"), ("s", "vcc_hi")}
    if op in ("vcc_lo", "vcc_hi"): return {("s", op)}
    if op == "exec": return {("s", "exec_lo"), ("s", "exec_hi")}
    if op in ("exec_lo", "exec_hi", "m0"): return {("s", op)}
    return set()
class I:
    def __init__(self, line):
        self.line = line
        t = line.split(";")[0].strip()
        self.label = t[:-1] if t.endswith(":") else None
        self.op = None; self.w = set(); self.r = set(); self.ws = 1
        self.valu = self.mfma = self.trans = self.dpp = self.perm = self.rl = self.vmem = self.ds = self.salu = False
        self.wide_store = set(); self.a = self.b = self.c = set(); self.target = None; self.uncond = False; self.passes = 0
        self.lanesel = set()
        if self.label or not t or t.startswith("."):
            self.ws = 0; return
        p = t.split(None, 1); self.op = op = p[0]
        rest = p[1] if len(p) > 1 else ""
        rest = re.sub(r"(quad_perm|op_sel|op_sel_hi|neg_lo|neg_hi):\[[^\]]*\]", r"\1", rest)
        ops = [x.strip() for x in rest.split(",")] if rest else []
        if ops:
            last = ops[-1].split()
            ops[-1] = last[0] if last else ""
            mods = " ".join(last[1:])
        else: mods = ""
        R = [regs(x) for x in ops]
        if op == "s_nop": self.ws = int(ops[0], 0) + 1; return
        if op.startswith("s_cbranch") or op == "s_branch":
            self.target = ops[0]; self.uncond = op == "s_branch"; return
        if op == "s_endpgm": self.uncond = True; return
        if op.startswith("v_mfma"):
            self.mfma = True; self.w = R[0]; self.a, self.b, self.c = R[1], R[2], R[3]; self.r = R[1] | R[2] | R[3]
            self.passes = 8 if ("32x32x16" in op or "32x32x8" in op or "16x16x4_f32" in op) else (2 if "4x4x4" in op else 4)
            return
        if op.startswith("v_"):
            self.valu = True
            base = re.sub(r"_(e32|e64|dpp|sdwa)$", "", op)
            self.trans = base in TRANS
            self.dpp = op.endswith("_dpp") or "row_" in mods or "quad_perm" in mods
            self.perm = base.startswith("v_permlane")
            self.rl = base in ("v_readfirstlane_b32", "v_readlane_b32", "v_writelane_b32")
            if self.perm: self.w = R[0] | R[1]; self.r = R[0] | R[1]; return
            nd = 2 if (base.endswith("_co_u32") or base in ("v_div_scale_f32", "v_mad_u64_u32")) else 1
            for x in R[:nd]: self.w |= x
            for x in R[nd:]: self.r |= x
            if base.startswith(("v_fmac", "v_pk_fmac", "v_dot2c", "v_writelane")) or self.dpp: self.r |= R[0]
            if base in ("v_readlane_b32", "v_writelane_b32") and len(R) > 2: self.lanesel = R[2]
            if base.startswith("v_cmpx"): raise Exception("no cmpx please")
            return
        if op.startswith(("buffer_", "global_", "flat_")):
            self.vmem = True
            isload = "_load" in op; lds = " lds" in (" " + mods)
            if op.startswith("buffer_"):
                if op in ("buffer_wbl2", "buffer_inv"): return
                if isload and not lds:
                    self.w = R[0]
                    for x in R[1:]: self.r |= x
                else:
                    for x in R: self.r |= x
                    if "atomic" in op and "sc0" in mods: self.w = R[0]
                    if ("x4" in op or "x3" in op) and not isload: self.wide_store = R[0]
            else:
                if isload and not lds:
                    self.w = R[0]
                    for x in R[1:]: self.r |= x
                else:
                    for x in R: self.r |= x
                    if ("x4" in op or "x3" in op) and not isload: self.wide_store = R[1]
            return
        if op.startswith("ds_"):
            self.ds = True
            if op.startswith(("ds_read", "ds_bpermute", "ds_permute", "ds_swizzle")) or "_rtn" in op:
                self.w = R[0]
                for x in R[1:]: self.r |= x
            else:
                for x in R: self.r |= x
            return
        if op.startswith("s_"):
            self.salu = True
            if op.startswith(("s_cmp", "s_waitcnt", "s_barrier", "s_sleep", "s_setprio")):
                for x in R: self.r |= x
            else:
                if R: self.w = R[0]
                for x in R[1:]: self.r |= x
                if "saveexec" in op: self.w |= regs("exec")
            return
        raise Exception("unknown instr: " + line)
def V(s): return {x for x in s if x[0] in "va"}
def S(s): return {x for x in s if x[0] == "s"}
def need(p, c):
    n = 0
    if p.valu:
        vw = V(p.w); sw = S(p.w)
        if c.mfma and vw & c.r: n = max(n, 2)
        if c.valu and (c.dpp or c.perm) and vw & V(c.r): n = max(n, 2)
        if c.valu and c.rl and vw & V(c.r): n = max(n, 1)
        if c.valu and sw & S(c.r): n = max(n, 2)
        if c.valu and sw & c.lanesel: n = max(n, 4)
        if c.vmem and sw & S(c.r): n = max(n, 5)
        if p.trans and (c.valu and not c.trans) and vw & c.r: n = max(n, 1)
        if p.trans and c.mfma and vw & c.r: n = max(n, 2)
    if p.mfma:
        k = {2: 0, 4: 1, 8: 2}[p.passes]
        if c.mfma:
            if p.w & (c.a | c.b): n = max(n, (5, 8, 12)[k])
            if p.w & c.c:
                if not (p.w == c.c and p.passes == c.passes): n = max(n, (4, 6, 10)[k])
                elif p.passes == 2: n = max(n, 2)
            elif p.w & c.w: n = max(n, (5, 8, 12)[k])
        elif c.valu or c.vmem or c.ds:
            if p.w & (c.r | c.w): n = max(n, (5, 8, 12)[k])
            if c.valu and p.c & c.w: n = max(n, (1, 3, 7)[k])
    if p.vmem and p.wide_store and (c.valu or c.mfma) and p.wide_store & c.w: n = max(n, 2)
    if p.vmem and p.wide_store and (c.vmem or c.ds) and p.wide_store & c.w: n = max(n, 1)
    if p.salu and ("s", "m0") in p.w and c.vmem and " lds" in c.line: n = max(n, 1)
    return n
def fix(text, verbose=False):
    ins = [I(l) for l in text.split("\n")]
    changed = True; total = 0
    while changed:
        changed = False
        labels = {x.label: i for i, x in enumerate(ins) if x.label}
        preds = {}
        for i, x in enumerate(ins):
            if x.target: preds.setdefault(labels[x.target], []).append(i)
        def walk_back(i, dist, c, seen):
            best = 0; j = i - 1
            while j >= 0 and dist < 13:
                x = ins[j]
                if x.label:
                    for b in preds.get(j, []):
                        if (b, dist) not in seen:
                            seen.add((b, dist)); best = max(best, walk_back(b + 1, dist, c, seen, True) if False else wb2(b, dist, c, seen))
                elif x.op:
                    if x.uncond and j != i - 1 or (x.uncond and j == i - 1): return best
                    best = max(best, need(x, c) - dist)
                    dist += x.ws
                j -= 1
            return best
        def wb2(b, dist, c, seen):
            dist += 1
            return walk_back(b, dist, c, seen)
        for i, c in enumerate(ins):
            if not c.op or c.op == "s_nop": continue
            d = walk_back(i, 0, c, set())
            if d > 0:
                if verbose: print("nop", d, "before", c.line.strip())
                ins.insert(i, I(f"    s_nop {d-1}")); total += d
                changed = True; break
    return "\n".join(x.line for x in ins), total
```

```python
import sys
from asmlib import *
import hazard

WS_QP = 0x10000
WS_ML = 0x40000
WS_H  = 0x50000
WS_Z  = 0x80000
WS_Y  = 0x100000
STAMP = 0x8000000
NG = 54
L_QPART = 0
L_QBF = 4096
L_FLAG = 4352
L_OS = 4608
OS_STR = 528
L_ML = 13056
L_YP = 13312
L_RP = 33792
L_XN = 34304
L_GP = 35584
L_END = 39680
sX, sK, sV, sWQ, sWO, sWS, sDBG, sOUT, sDN = 28, 32, 36, 40, 44, 48, 52, 56, 60
sW, sHEAD, sSPLIT, sP, sR, sG = 64, 65, 66, 67, 68, 69
sKV = 70
sWO0, sWO1 = 74, 75
sT0, sT1, sT2, sT3 = 76, 77, 78, 79
sLOI = 80
sLO32 = 82
sEX = 84
sCNT = 86
sLOG2E, sSCALE = 87, 88
sHIM = 89
sST = 90
vTID, vLANE, vL16, vKOFF, vWOFF, vYOFF = 0, 1, 2, 3, 4, 5
vM = 6
vA, vB, vC, vD, vE, vF = 10, 11, 12, 13, 14, 15
vQ = 16
vS = 32
vK = 48
vV = 112
vWO = 176

def f2u(x):
    import struct
    return struct.unpack("<I", struct.pack("<f", x))[0]

class Gen:
    def __init__(self, **c):
        d = dict(kvpol="nt", wopol="nt", wqpol="nt", ffpol="nt", nE=6, nafter=2, qkpos=32, signal="byte",
                 nrep=8, stamps=False, stampwave=0, prio=True, dbg=None)
        d.update(c); self.c = d
        self.a = Asm()
        self.q = []
        self.nst = 0
    def vm(self, text, tag=None):
        self.a(text); self.q.append(tag)
    def wait(self, tag):
        idx = max(i for i, t in enumerate(self.q) if t == tag)
        n = len(self.q) - 1 - idx
        assert n <= 63
        self.a(f"s_waitcnt vmcnt({n})")
        self.q = self.q[idx + 1:]
    def waitall(self):
        self.a("s_waitcnt vmcnt(0)"); self.q = []
    def stamp(self, k):
        if self.c["stamps"]:
            self.a(f"s_memrealtime s[{self.streg(k)}:{self.streg(k)+1}]")
    def streg(self, k):
        pool = [90, 92, 94, 96, 98, 100, 4, 6, 8, 10, 12, 14, 22, 24, 26]
        return pool[k]
    def rowred(self, op, regs, steps):
        for s in steps:
            for r in regs:
                self.a(f"{op}_dpp v{r}, v{r}, v{r} row_ror:{s} row_mask:0xf bank_mask:0xf")
    def xrow(self, op, regs, tmps, which=(16, 32)):
        for wsw in which:
            for r, t in zip(regs, tmps): self.a(f"v_mov_b32 v{t}, v{r}")
            for r, t in zip(regs, tmps): self.a(f"v_permlane{wsw}_swap_b32 v{r}, v{t}")
            for r, t in zip(regs, tmps): self.a(f"{op} v{r}, v{r}, v{t}")
    def allred(self, op, r, t):
        self.rowred(op, [r], (8, 4, 2, 1)); self.xrow(op, [r], [t])
    def rbf(self, d, s):
        self.a(f"v_cvt_pk_bf16_f32 v{d}, v{s}, v{s}\nv_and_b32 v{d}, s{sHIM}, v{d}")
    def tree(self, op, regs):
        regs = list(regs)
        while len(regs) > 1:
            nxt = []
            for i in range(0, len(regs) - 1, 2):
                self.a(f"{op} v{regs[i]}, v{regs[i]}, v{regs[i+1]}"); nxt.append(regs[i])
            if len(regs) % 2: nxt.append(regs[-1])
            regs = nxt
        return regs[0]
    def ln_stats(self, xs, t0, t1, t2):
        a = self.a
        a(f"v_add_f32 v{t0}, v{xs[0]}, v{xs[1]}\nv_add_f32 v{t1}, v{xs[2]}, v{xs[3]}")
        for k in range(4, 10, 2):
            a(f"v_add_f32 v{t0}, v{t0}, v{xs[k]}\nv_add_f32 v{t1}, v{t1}, v{xs[k+1]}")
        a(f"v_add_f32 v{t0}, v{t0}, v{t1}")
        self.allred("v_add_f32", t0, t2)
        a(f"v_mul_f32 v{t0}, {hex(f2u(1.0/640))}, v{t0}")
        a(f"v_sub_f32 v{t2}, v{xs[0]}, v{t0}\nv_mul_f32 v{t1}, v{t2}, v{t2}")
        for k in range(1, 10):
            a(f"v_sub_f32 v{t2}, v{xs[k]}, v{t0}\nv_fmac_f32 v{t1}, v{t2}, v{t2}")
        self.allred("v_add_f32", t1, t2)
        a(f"v_mul_f32 v{t1}, {hex(f2u(1.0/640))}, v{t1}")
        self.rbf(t1, t1)
        a(f"v_add_f32 v{t1}, {hex(f2u(1e-5))}, v{t1}")
        self.rbf(t1, t1)
        a(f"v_sqrt_f32 v{t1}, v{t1}")
        self.rbf(t0, t0)
        self.rbf(t1, t1)
        a(f"v_rcp_f32 v{t1}, v{t1}")
        return t0, t1
    def sentinel(self, regs, t):
        a = self.a; regs = list(regs)
        a(f"v_max3_u32 v{t}, v{regs[0]}, v{regs[1]}, v{regs[2]}" if len(regs) >= 3 else f"v_max_u32 v{t}, v{regs[0]}, v{regs[1]}")
        rest = regs[3:]
        while len(rest) >= 2:
            a(f"v_max3_u32 v{t}, v{t}, v{rest[0]}, v{rest[1]}"); rest = rest[2:]
        if rest: a(f"v_max_u32 v{t}, v{t}, v{rest[0]}")
        a(f"v_cmp_eq_u32 vcc, -1, v{t}\ns_cmp_lg_u64 vcc, 0")
    def bound(self, lx, lim=1 << 16):
        self.a(f"s_add_u32 s{sCNT}, s{sCNT}, 1\ns_cmp_gt_u32 s{sCNT}, {lim}\ns_cbranch_scc1 {lx}")

    def build(self):
        a, c = self.a, self.c
        NREP = c["nrep"]
        a(f"""
        s_cmp_ge_u32 s2, 256
        s_cbranch_scc1 L_end""")
        self.stamp(0)
        a(f"""
        s_load_dwordx16 s[4:19], s[0:1], 0
        s_load_dwordx8 s[20:27], s[0:1], 64
        v_lshrrev_b32 v{vA}, 6, v0
        v_and_b32 v{vLANE}, 63, v0
        s_and_b32 s{sT0}, s2, 7
        s_lshr_b32 s{sT1}, s2, 3
        v_readfirstlane_b32 s{sW}, v{vA}
        s_and_b32 s{sT2}, s{sT1}, 3
        s_lshl_b32 s{sHEAD}, s{sT0}, 2
        s_add_u32 s{sHEAD}, s{sHEAD}, s{sT2}
        s_lshr_b32 s{sSPLIT}, s{sT1}, 2
        s_lshl_b32 s{sP}, s{sHEAD}, 3
        s_add_u32 s{sP}, s{sP}, s{sSPLIT}
        s_sub_u32 s{sR}, s2, 216
        s_cmp_ge_u32 s2, 216
        s_cselect_b32 s{sR}, s{sR}, -1
        s_lshr_b32 s{sT2}, s{sT1}, 1
        s_lshl_b32 s{sT2}, s{sT2}, 3
        s_add_u32 s{sT2}, s{sT2}, s{sT0}
        s_and_b32 s{sT3}, s{sT1}, 1
        s_lshl_b32 s{sG}, s{sT2}, 1
        s_add_u32 s{sG}, s{sG}, s{sT3}
        s_cmp_lt_u32 s{sT2}, 27
        s_cselect_b32 s{sG}, s{sG}, -1
        s_lshl_b32 s{sKV}, s{sHEAD}, 20
        s_lshl_b32 s{sT2}, s{sSPLIT}, 17
        s_add_u32 s{sKV}, s{sKV}, s{sT2}
        s_lshl_b32 s{sT2}, s{sW}, 14
        s_add_u32 s{sKV}, s{sKV}, s{sT2}
        s_add_u32 s{sKV+1}, s{sKV}, 4096
        s_add_u32 s{sKV+2}, s{sKV}, 8192
        s_add_u32 s{sKV+3}, s{sKV}, 12288
        s_mul_i32 s{sWO0}, s{sHEAD}, 163840
        s_mul_i32 s{sT2}, s{sW}, 20480
        s_add_u32 s{sWO0}, s{sWO0}, s{sT2}
        s_add_u32 s{sWO1}, s{sWO0}, 2560
        s_mov_b32 s{sLOI}, 0x00ff00ff
        s_mov_b32 s{sLOI+1}, 0x00ff00ff
        s_mov_b32 s{sLO32}, -1
        s_mov_b32 s{sLO32+1}, 0
        s_mov_b32 s{sLOG2E}, {hex(f2u(1.4426950408889634))}
        s_mov_b32 s{sSCALE}, {hex(f2u(128 ** -0.5))}
        s_mov_b32 s{sHIM}, 0xffff0000
        v_lshlrev_b32 v{vL16}, 4, v{vLANE}
        v_lshrrev_b32 v{vA}, 4, v{vLANE}          ; g
        v_and_b32 v{vB}, 15, v{vLANE}             ; i
        v_mul_u32_u24 v{vC}, 20, v{vLANE}         ; x offset
        v_lshlrev_b32 v{vD}, 4, v{vB}
        v_lshl_add_u32 v{vE}, v{vA}, 13, v{vD}
        v_lshlrev_b32 v{vF}, 1, v{vA}
        v_mul_u32_u24 v{vWOFF}, 5120, v{vA}
        v_add_u32 v{vWOFF}, v{vWOFF}, v{vD}
        ; K offset: (4*(i&3) + (i>>2))*256 + g*16
        v_and_b32 v{vD}, 3, v{vLANE}
        v_lshlrev_b32 v{vKOFF}, 10, v{vD}
        v_bfe_u32 v{vM}, v{vLANE}, 2, 2
        v_lshl_add_u32 v{vKOFF}, v{vM}, 8, v{vKOFF}
        v_lshl_add_u32 v{vKOFF}, v{vA}, 4, v{vKOFF}
        v_lshrrev_b32 v{vM}, 2, v0
        v_lshlrev_b32 v{vYOFF}, 14, v{vM}
        v_lshl_add_u32 v{vYOFF}, v{vD}, 4, v{vYOFF}
        s_mul_i32 s{sT0}, s{sSPLIT}, 80
        s_lshl_b32 s{sT1}, s{sW}, 2
        s_add_u32 s{sT0}, s{sT0}, s{sT1}
        s_lshl_b32 s{sT1}, s{sT0}, 13
        s_lshl_b32 s{sT2}, s{sHEAD}, 8
        s_add_u32 s{sT1}, s{sT1}, s{sT2}          ; wq byte offset of group 0
        s_lshl_b32 s{sT0}, s{sT0}, 1              ; x byte offset of group 0
        s_add_u32 s{sT2}, s{sT1}, {32*8192}
        s_add_u32 s{sT3}, s{sT1}, {64*8192}
        s_cmp_lt_u32 s{sW}, 4
        s_cselect_b32 s{sT3}, s{sT3}, 0x1000000
        s_waitcnt lgkmcnt(0)""")
        def srd(d, p, n):
            a(f"s_mov_b32 s{d}, s{p}\ns_mov_b32 s{d+1}, s{p+1}\ns_mov_b32 s{d+2}, {hex(n)}\ns_mov_b32 s{d+3}, 0x20000")
        srd(sX, 4, 1280); srd(sWQ, 10, 640 * 8192)
        XR = 128
        xw = XR
        xr = XR + 5
        wq = XR + 8
        xs = XR + 20
        self.vm(f"buffer_load_dwordx4 v[{xw}:{xw+3}], v{vC}, s[{sX}:{sX+3}], 0 offen", "x")
        self.vm(f"buffer_load_dword v{xw+4}, v{vC}, s[{sX}:{sX+3}], 0 offen offset:16", "x")
        for k in range(3):
            self.vm(f"buffer_load_ushort v{xr+k}, v{vF}, s[{sX}:{sX+3}], s{sT0} offen offset:{64*k}", "x")
        for k, so in enumerate((sT1, sT2, sT3)):
            self.vm(f"buffer_load_dwordx4 v[{wq+4*k}:{wq+4*k+3}], v{vE}, s[{sWQ}:{sWQ+3}], s{so} offen {c['wqpol']}", "wq")
        srd(sK, 6, 0x2000000); srd(sWO, 12, 4096 * 1280); srd(sV, 8, 0x2000000)
        srd(sWS, 26, 0x10000000); srd(sDBG, 24, 256); srd(sOUT, 22, 1280); srd(sDN, 20, 1728 * 1280)
        Kl = [(f"buffer_load_dwordx4 v[{vK+16*T+4*d}:{vK+16*T+4*d+3}], v{vKOFF}, s[{sK}:{sK+3}], s{sKV+T} offen offset:{64*d} {c['kvpol']}", f"K{T}") for T in range(4) for d in range(4)]
        Vl = [(f"buffer_load_dwordx4 v[{vV+16*T+4*r}:{vV+16*T+4*r+3}], v{vL16}, s[{sV}:{sV+3}], s{sKV+T} offen offset:{1024*r} {c['kvpol']}", f"V{T}{r}") for T in range(4) for r in range(4)]
        Ol = [(f"buffer_load_dwordx4 v[{vWO+20*t+4*b}:{vWO+20*t+4*b+3}], v{vWOFF}, s[{sWO}:{sWO+3}], s{sWO0 if t < 2 else sWO1} offen offset:{(t&1)*1280+256*b} {c['wopol']}", f"O{t}{b}") for t in range(4) for b in range(5)]
        def inter(A, B):
            out = []; i = j = 0
            while i < len(A) or j < len(B):
                if j >= len(B) or (i < len(A) and i * len(B) <= j * len(A)):
                    out.append(A[i]); i += 1
                else:
                    out.append(B[j]); j += 1
            return out
        na = c["nafter"]; nin = 20 - na
        seq = inter(Kl + Vl, Ol[:nin]) + Ol[nin:]
        E, seq = seq[:c["nE"]], seq[c["nE"]:]
        assert all(not t.startswith("V") for _, t in E)
        a(f"s_cmp_eq_u32 s{sW}, 0\ns_cbranch_scc1 L_w0a")
        q0 = list(self.q)
        if c["prio"]: a("s_setprio 3")
        for t, g in E: self.vm(t, g)
        a("s_branch L_w0b\nL_w0a:")
        a(f"""s_setprio 3
        v_mov_b32 v{vS}, -1
        v_mov_b32 v{vS+1}, -1
        v_mov_b32 v{vS+2}, -1
        v_mov_b32 v{vS+3}, -1
        s_lshl_b32 s{sT0}, s{sP}, 6
        s_add_u32 s{sT0}, s{sT0}, {WS_Y}
        s_add_u32 s{sT1}, s{sT0}, {16*16384}
        s_add_u32 s{sT2}, s{sT0}, {32*16384}
        buffer_store_dwordx4 v[{vS}:{vS+3}], v{vYOFF}, s[{sWS}:{sWS+3}], s{sT0} offen sc1
        buffer_store_dwordx4 v[{vS}:{vS+3}], v{vYOFF}, s[{sWS}:{sWS+3}], s{sT1} offen sc1
        s_mov_b64 exec, s[{sLO32}:{sLO32+1}]
        buffer_store_dwordx4 v[{vS}:{vS+3}], v{vYOFF}, s[{sWS}:{sWS+3}], s{sT2} offen sc1
        s_lshl_b32 s{sT0}, s{sP}, 3
        s_add_u32 s{sT0}, s{sT0}, {WS_ML}
        s_mov_b64 exec, 1
        buffer_store_dwordx2 v[{vS}:{vS+1}], v{vL16}, s[{sWS}:{sWS+3}], s{sT0} offen sc1
        s_mov_b64 exec, -1
        s_cmp_eq_u32 s{sG}, -1
        s_cbranch_scc1 L_c1
        v_lshrrev_b32 v{vS+4}, 2, v{vLANE}
        v_mul_u32_u24 v{vS+4}, {NG*64}, v{vS+4}
        v_and_b32 v{vS+5}, 3, v{vLANE}
        v_lshl_add_u32 v{vS+4}, v{vS+5}, 4, v{vS+4}
        s_lshl_b32 s{sT0}, s{sG}, 6
        s_add_u32 s{sT0}, s{sT0}, {WS_Z}
        s_add_u32 s{sT1}, s{sT0}, {16*NG*64}
        s_add_u32 s{sT2}, s{sT0}, {32*NG*64}
        buffer_store_dwordx4 v[{vS}:{vS+3}], v{vS+4}, s[{sWS}:{sWS+3}], s{sT0} offen sc1
        buffer_store_dwordx4 v[{vS}:{vS+3}], v{vS+4}, s[{sWS}:{sWS+3}], s{sT1} offen sc1
        s_mov_b64 exec, s[{sLO32}:{sLO32+1}]
        buffer_store_dwordx4 v[{vS}:{vS+3}], v{vS+4}, s[{sWS}:{sWS+3}], s{sT2} offen sc1
        s_mov_b64 exec, -1
        L_c1:
        s_cmp_eq_u32 s{sR}, -1
        s_cbranch_scc1 L_c2""")
        self.hoff(vS + 4, vS + 5)
        a(f"""s_lshl_b32 s{sT0}, s{sR}, 6
        s_add_u32 s{sT0}, s{sT0}, {WS_H}
        buffer_store_dwordx4 v[{vS}:{vS+3}], v{vS+4}, s[{sWS}:{sWS+3}], s{sT0} offen sc1
        L_c2:
        s_waitcnt vmcnt(0)
        L_w0b:""")
        a(f"""v_and_b32 v{vA}, 1, v{vLANE}
        v_lshlrev_b32 v{vA}, 4, v{vA}
        v_mov_b32 v{vB}, 0xffff
        v_lshlrev_b32 v{vA}, v{vA}, v{vB}
        v_bfe_u32 v{vB}, v{vLANE}, 1, 2""")
        for w in range(4):
            a(f"v_cmp_eq_u32 vcc, {w}, v{vB}\nv_cndmask_b32 v{vM+w}, 0, v{vA}, vcc")
        a(f"""v_lshrrev_b32 v{vA}, 4, v{vLANE}
        v_and_b32 v{vB}, 15, v{vLANE}
        v_lshlrev_b32 v{vC}, 5, v{vB}
        v_lshl_add_u32 v{vC}, v{vA}, 4, v{vC}       ; j*32 + g*16
        s_lshl_b32 s{sT0}, s{sW}, 9
        v_add_u32 v{vD}, s{sT0}, v{vC}
        v_mov_b32 v{vE}, 0
        ds_write_b32 v{vE}, v{vE} offset:{L_FLAG}""")
        self.wait("x")
        self.stamp(1)
        for k in range(5):
            a(f"v_lshlrev_b32 v{xs+2*k}, 16, v{xw+k}\nv_and_b32 v{xs+2*k+1}, s{sHIM}, v{xw+k}")
        mb, rs = self.ln_stats([xs + k for k in range(10)], xs + 10, xs + 11, xs + 12)
        Aq = vQ
        for k in range(3):
            a(f"v_lshlrev_b32 v{xr+k}, 16, v{xr+k}\nv_sub_f32 v{xr+k}, v{xr+k}, v{mb}")
            self.rbf(xr + k, xr + k)
            a(f"v_mul_f32 v{xr+k}, v{xr+k}, v{rs}\nv_cvt_pk_bf16_f32 v{xr+k}, v{xr+k}, v{xr+k}")
            for w in range(4): a(f"v_and_b32 v{Aq+4*k+w}, v{xr+k}, v{vM+w}")
        self.wait("wq")
        for k in range(3):
            a(f"v_mfma_f32_16x16x32_bf16 v[{vS}:{vS+3}], v[{Aq+4*k}:{Aq+4*k+3}], v[{wq+4*k}:{wq+4*k+3}], {'0' if k == 0 else f'v[{vS}:{vS+3}]'}")
        a(f"""s_mov_b64 exec, s[{sLO32}:{sLO32+1}]
        ds_write_b128 v{vD}, v[{vS}:{vS+3}] offset:{L_QPART}
        s_mov_b64 exec, -1
        s_waitcnt lgkmcnt(0)
        s_barrier""")
        self.stamp(2)
        a(f"s_cmp_lg_u32 s{sW}, 0\ns_cbranch_scc1 L_merge")
        T = vV
        a(f"v_lshlrev_b32 v{vA}, 3, v{vLANE}")
        for w in range(8): a(f"ds_read_b64 v[{T+2*w}:{T+2*w+1}], v{vA} offset:{L_QPART+512*w}")
        a(f"""s_lshl_b32 s{sT0}, s{sP}, 9
        s_add_u32 s{sT0}, s{sT0}, {WS_QP}
        s_waitcnt lgkmcnt(0)""")
        self.tree("v_add_f32", [T + 2 * w for w in range(8)]); self.tree("v_add_f32", [T + 2 * w + 1 for w in range(8)])
        a(f"""buffer_store_dwordx2 v[{T}:{T+1}], v{vA}, s[{sWS}:{sWS+3}], s{sT0} offen sc1
        v_mov_b32 v{vB}, 1
        v_mov_b32 v{vE}, 0
        s_waitcnt vmcnt(0)
        s_mov_b64 exec, 1""")
        if c["signal"] == "byte":
            a(f"buffer_store_byte v{vB}, v{vE}, s[{sDBG}:{sDBG+3}], s{sP} offen sc1")
        else:
            a(f"s_lshl_b32 s{sT0}, s{sHEAD}, 2\nbuffer_atomic_add v{vB}, v{vE}, s[{sDBG}:{sDBG+3}], s{sT0} offen sc1")
        a("s_mov_b64 exec, -1")
        self.stamp(3)
        if c["signal"] == "byte":
            a(f"v_lshlrev_b32 v{vA}, 2, v{vLANE}\ns_mov_b32 s{sT1}, 0x01010101")
        else:
            a(f"v_and_b32 v{vA}, 31, v{vLANE}\nv_lshlrev_b32 v{vA}, 2, v{vA}\ns_mov_b32 s{sT1}, 8")
        a(f"""s_mov_b32 s{sCNT}, 0
        L_pq:""")
        self.bound("L_pqx")
        a(f"""buffer_load_dword v{vB}, v{vA}, s[{sDBG}:{sDBG+3}], 0 offen sc1
        s_waitcnt vmcnt(0)
        v_cmp_ne_u32 vcc, s{sT1}, v{vB}
        s_cmp_lg_u64 vcc, 0
        s_cbranch_scc1 L_pq
        L_pqx:""")
        self.stamp(4)
        a(f"s_lshl_b32 s{sT0}, s{sHEAD}, 12\ns_add_u32 s{sT0}, s{sT0}, {WS_QP}")
        for u in range(4): a(f"buffer_load_dwordx4 v[{T+4*u}:{T+4*u+3}], v{vL16}, s[{sWS}:{sWS+3}], s{sT0} offen offset:{1024*u} sc1")
        a(f"v_and_b32 v{vA}, 31, v{vLANE}\nv_lshlrev_b32 v{vA}, 3, v{vA}\ns_waitcnt vmcnt(0)")
        for r in range(4): self.tree("v_add_f32", [T + 4 * u + r for u in range(4)])
        self.xrow("v_add_f32", [T + r for r in range(4)], [T + 4 + r for r in range(4)], which=(32,))
        a(f"""v_cvt_pk_bf16_f32 v{T}, v{T}, v{T+1}
        v_cvt_pk_bf16_f32 v{T+1}, v{T+2}, v{T+3}
        v_mov_b32 v{vB}, 1
        ds_write_b64 v{vA}, v[{T}:{T+1}] offset:{L_QBF}
        ds_write_b32 v{vE}, v{vB} offset:{L_FLAG}""")
        self.stamp(5)
        for t, g in E: a(t)
        a("L_merge:")
        qk = c["qkpos"] - c["nE"]
        pre, post = seq[:qk], seq[qk:]
        assert all(not t.startswith("K") for _, t in post)
        ntot = 52; done = c["nE"]
        def issue(lst):
            nonlocal done
            for t, g in lst:
                if c["prio"] and done % 13 == 0 and done > 0: a(f"s_setprio {3 - done // 13}")
                self.vm(t, g); done += 1
        issue(pre)
        a(f"""v_lshrrev_b32 v{vA}, 4, v{vLANE}
        v_lshlrev_b32 v{vB}, 4, v{vA}               ; g*16
        v_mov_b32 v{vE}, 0
        s_mov_b32 s{sCNT}, 0
        L_qf:""")
        self.bound("L_qfx", 1 << 20)
        a(f"""ds_read_b32 v{vF}, v{vE} offset:{L_FLAG}
        s_waitcnt lgkmcnt(0)
        v_readfirstlane_b32 s{sT0}, v{vF}
        s_cmp_eq_u32 s{sT0}, 0
        s_cbranch_scc1 L_qf
        L_qfx:""")
        for d in range(4): a(f"ds_read_b128 v[{vQ+4*d}:{vQ+4*d+3}], v{vB} offset:{L_QBF+64*d}")
        a("s_waitcnt lgkmcnt(0)")
        for T_ in range(4):
            self.wait(f"K{T_}")
            for d in range(4):
                D = vS + 4 * T_
                a(f"v_mfma_f32_16x16x32_bf16 v[{D}:{D+3}], v[{vK+16*T_+4*d}:{vK+16*T_+4*d+3}], v[{vQ+4*d}:{vQ+4*d+3}], {'0' if d == 0 else f'v[{D}:{D+3}]'}")
        for u in range(2):
            for r in range(4):
                a(f"v_cndmask_b32 v{vS+4*u+r}, v{vS+8*u+4+r}, v{vS+8*u+r}, s[{sLOI}:{sLOI+1}]")
        t8 = vS + 8
        for k in range(4): a(f"v_cvt_pk_bf16_f32 v{t8+k}, v{vS+2*k}, v{vS+2*k+1}")
        for k in range(4): a(f"v_lshlrev_b32 v{vS+2*k}, 16, v{t8+k}\nv_and_b32 v{vS+2*k+1}, s{sHIM}, v{t8+k}")
        for k in range(8): a(f"v_mul_f32 v{vS+k}, s{sSCALE}, v{vS+k}")
        for k in range(4): a(f"v_cvt_pk_bf16_f32 v{t8+k}, v{vS+2*k}, v{vS+2*k+1}")
        for k in range(4): a(f"v_lshlrev_b32 v{vS+2*k}, 16, v{t8+k}\nv_and_b32 v{vS+2*k+1}, s{sHIM}, v{t8+k}")
        mx = t8; ls = t8 + 1
        a(f"""v_max3_f32 v{mx}, v{vS}, v{vS+1}, v{vS+2}
        v_max3_f32 v{mx+2}, v{vS+3}, v{vS+4}, v{vS+5}
        v_max3_f32 v{mx}, v{mx}, v{vS+6}, v{vS+7}
        v_max_f32 v{mx}, v{mx}, v{mx+2}""")
        self.rowred("v_max_f32", [mx], (8,)); self.xrow("v_max_f32", [mx], [mx + 2])
        a(f"v_mul_f32 v{mx}, s{sLOG2E}, v{mx}")
        for k in range(8): a(f"v_fma_f32 v{vS+k}, v{vS+k}, s{sLOG2E}, -v{mx}")
        for k in range(8): a(f"v_exp_f32 v{vS+k}, v{vS+k}")
        PA = vK
        for k in range(8):
            a(f"v_cvt_pk_bf16_f32 v{mx+3}, v{vS+k}, v{vS+k}")
            for w in range(4): a(f"v_and_b32 v{PA+4*k+w}, v{mx+3}, v{vM+w}")
        a(f"v_add_f32 v{ls}, v{vS}, v{vS+1}")
        for k in range(2, 8): a(f"v_add_f32 v{ls}, v{ls}, v{vS+k}")
        self.xrow("v_add_f32", [ls], [mx + 2])
        a(f"""v_bfe_u32 v{vC}, v{vLANE}, 3, 1
        s_lshl_b32 s{sT0}, s{sW}, 1
        v_add_u32 v{vC}, s{sT0}, v{vC}
        v_lshlrev_b32 v{vC}, 3, v{vC}
        s_mov_b64 exec, 0x101
        ds_write_b64 v{vC}, v[{mx}:{mx+1}] offset:{L_ML}
        s_mov_b64 exec, -1
        v_lshrrev_b32 v{vC}, 5, v{vLANE}
        v_add_u32 v{vC}, s{sT0}, v{vC}
        v_mul_u32_u24 v{vC}, {OS_STR}, v{vC}
        v_and_b32 v{vD}, 15, v{vLANE}
        v_lshl_add_u32 v{vC}, v{vD}, 5, v{vC}
        v_bfe_u32 v{vE}, v{vLANE}, 4, 1
        v_lshl_add_u32 v{vC}, v{vE}, 4, v{vC}
        v_mul_u32_u24 v{vF}, {OS_STR}, v{vD}
        s_lshl_b32 s{sT0}, s{sW}, 6
        v_add3_u32 v{vF}, v{vF}, v{vB}, s{sT0}
        v_lshlrev_b32 v{vE}, 3, v{vD}
        v_lshl_add_u32 v{vD}, v{vD}, 5, v{vB}
        s_mul_i32 s{sT0}, s{sW}, 2560
        v_add_u32 v{vD}, s{sT0}, v{vD}""")
        issue(post)
        self.stamp(6)
        acc = [vS, vS + 4]
        for T_ in range(4):
            for r in range(4):
                self.wait(f"V{T_}{r}")
                A_ = PA + 16 * (T_ >> 1) + 4 * r; D = acc[T_ & 1]
                first = T_ < 2 and r == 0
                a(f"v_mfma_f32_16x16x32_bf16 v[{D}:{D+3}], v[{A_}:{A_+3}], v[{vV+16*T_+4*r}:{vV+16*T_+4*r+3}], {'0' if first else f'v[{D}:{D+3}]'}")
        for r in range(4): a(f"v_cndmask_b32 v{vS+r}, v{vS+4+r}, v{vS+r}, s[{sLO32}:{sLO32+1}]")
        a(f"ds_write_b128 v{vC}, v[{vS}:{vS+3}] offset:{L_OS}")
        self.stamp(7)
        a(f"""s_waitcnt lgkmcnt(0)
        s_barrier
        ds_read_b64 v[{vS+8}:{vS+9}], v{vE} offset:{L_ML}
        ds_read_b128 v[{vS}:{vS+3}], v{vF} offset:{L_OS}
        s_waitcnt lgkmcnt(1)
        v_max_f32_dpp v{vS+10}, v{vS+8}, v{vS+8} row_ror:8 row_mask:0xf bank_mask:0xf""")
        self.rowred("v_max_f32", [vS + 10], (4, 2))
        a(f"""v_sub_f32 v{vS+8}, v{vS+8}, v{vS+10}
        v_exp_f32 v{vS+8}, v{vS+8}
        s_waitcnt lgkmcnt(0)""")
        for r in range(4): a(f"v_mul_f32 v{vS+r}, v{vS+r}, v{vS+8}")
        self.rowred("v_add_f32", [vS + r for r in range(4)], (8, 4, 2, 1))
        OA = vK; YA = vK + 16
        def abuild(t):
            return [f"v_cvt_pk_bf16_f32 v{vS+4}, v{vS+t}, v{vS+t}"] + [f"v_and_b32 v{OA+4*t+w}, v{vS+4}, v{vM+w}" for w in range(4)]
        for x in abuild(0): a(x)
        extra = [f"v_mul_f32 v{vS+11}, v{vS+9}, v{vS+8}"] + [f"v_add_f32_dpp v{vS+11}, v{vS+11}, v{vS+11} row_ror:{s} row_mask:0xf bank_mask:0xf" for s in (8, 4, 2, 1)]
        for t in range(4):
            fill = abuild(t + 1) if t < 3 else []
            for b in range(5):
                if f"O{t}{b}" in self.q: self.wait(f"O{t}{b}")
                D = YA + 4 * b
                a(f"v_mfma_f32_16x16x32_bf16 v[{D}:{D+3}], v[{OA+4*t}:{OA+4*t+3}], v[{vWO+20*t+4*b}:{vWO+20*t+4*b+3}], {'0' if t == 0 else f'v[{D}:{D+3}]'}")
                if fill: a(fill.pop(0))
                if extra and t < 2 and b % 2 == 0: a(extra.pop(0))
            if t == 1:
                assert not extra
                a(f"""s_lshl_b32 s{sT0}, s{sP}, 3
                s_add_u32 s{sT0}, s{sT0}, {WS_ML}
                s_cmp_eq_u32 s{sW}, 7
                s_cselect_b32 s{sT0}, s{sT0}, 0x10000000
                s_mov_b64 exec, 1""")
                self.vm(f"buffer_store_dwordx2 v[{vS+10}:{vS+11}], v{vL16}, s[{sWS}:{sWS+3}], s{sT0} offen sc1", "ml")
                a("s_mov_b64 exec, -1")
        a(f"s_mov_b64 exec, s[{sLO32}:{sLO32+1}]")
        for b in range(5): a(f"ds_write_b128 v{vD}, v[{YA+4*b}:{YA+4*b+3}] offset:{L_YP+512*b}")
        a(f"""s_mov_b64 exec, -1
        v_lshlrev_b32 v{vA}, 4, v0
        s_lshl_b32 s{sT0}, s{sP}, 6
        s_add_u32 s{sT0}, s{sT0}, {WS_Y}""")
        self.stamp(8)
        a(f"""s_waitcnt lgkmcnt(0)
        s_barrier
        s_cmp_ge_u32 s{sW}, 3
        s_cbranch_scc1 L_noy
        v_cmp_gt_u32 vcc, 160, v0
        s_and_saveexec_b64 s[{sEX}:{sEX+1}], vcc""")
        T = vWO
        for w in range(8): a(f"ds_read_b128 v[{T+4*w}:{T+4*w+3}], v{vA} offset:{L_YP+2560*w}")
        for w in range(0, 8, 2):
            a(f"s_waitcnt lgkmcnt({6-w})")
            for r in range(4): a(f"v_add_f32 v{T+4*w+r}, v{T+4*w+r}, v{T+4*w+4+r}")
            if w == 2 or w == 6:
                for r in range(4): a(f"v_add_f32 v{T+4*(w-2)+r}, v{T+4*(w-2)+r}, v{T+4*w+r}")
        for r in range(4): a(f"v_add_f32 v{T+r}, v{T+r}, v{T+16+r}")
        a(f"""buffer_store_dwordx4 v[{T}:{T+3}], v{vYOFF}, s[{sWS}:{sWS+3}], s{sT0} offen sc1
        s_mov_b64 exec, -1
        L_noy:""")
        self.stamp(9)
        self.q = []
        a(f"""s_cmp_lg_u32 s{sG}, -1
        s_cbranch_scc1 L_G
        s_cmp_eq_u32 s{sR}, -1
        s_cbranch_scc1 L_fin""")
        self.role_R()
        a("s_branch L_fin\nL_G:")
        self.role_G()
        a("L_fin:")
        if c["stamps"]:
            self.stamp(14)
            a(f"""s_waitcnt vmcnt(0) lgkmcnt(0)
            s_cmp_lg_u32 s{sW}, {c['stampwave']}
            s_cbranch_scc1 L_end
            s_mov_b64 exec, 1
            s_lshl_b32 s{sT0}, s2, 8
            s_add_u32 s{sT0}, s{sT0}, {STAMP}
            v_mov_b32 v{vA}, 0""")
            for k in range(15):
                r = self.streg(k)
                a(f"v_mov_b32 v{vS}, s{r}\nv_mov_b32 v{vS+1}, s{r+1}\nbuffer_store_dwordx2 v[{vS}:{vS+1}], v{vA}, s[{sWS}:{sWS+3}], s{sT0} offen offset:{8*k}\ns_waitcnt vmcnt(0)")
        a("L_end:")
        return a.text()

    def hoff(self, d, t):
        a = self.a; NREP = self.c["nrep"]
        a(f"""v_lshrrev_b32 v{t}, 4, v{vLANE}
        v_lshlrev_b32 v{t}, 2, v{t}
        v_and_b32 v{d}, 3, v{vLANE}
        v_add_u32 v{t}, v{t}, v{d}                  ; rep = (l&3) + 4*(l>>4)
        v_cmp_gt_u32 vcc, {NREP}, v{t}
        v_lshlrev_b32 v{t}, 12, v{t}
        v_bfe_u32 v{d}, v{vLANE}, 2, 2
        v_lshl_add_u32 v{d}, v{d}, 4, v{t}
        v_mov_b32 v{t}, 0x10000000
        v_cndmask_b32 v{d}, v{t}, v{d}, vcc""")

    def redscat(self, y):
        a = self.a
        a(f"""v_permlane32_swap_b32 v{y}, v{y+1}
        v_permlane32_swap_b32 v{y+2}, v{y+3}
        v_add_f32 v{y}, v{y}, v{y+1}
        v_add_f32 v{y+2}, v{y+2}, v{y+3}
        v_permlane16_swap_b32 v{y}, v{y+2}
        v_add_f32 v{y}, v{y}, v{y+2}""")
        self.rowred("v_add_f32", [y], (4, 8))

    def role_R(self):
        a, c = self.a, self.c
        ML = vK; Y = vK + 4; t = vK + 12; XV = vK + 24; COL = vK + 25; HO = vK + 26
        a(f"""s_lshl_b32 s{sT0}, s{sR}, 14
        s_lshl_b32 s{sT1}, s{sW}, 11
        s_add_u32 s{sT0}, s{sT0}, s{sT1}
        s_add_u32 s{sT0}, s{sT0}, {WS_Y}
        s_lshl_b32 s{sT1}, s{sW}, 8
        s_add_u32 s{sT1}, s{sT1}, {WS_ML}
        v_lshrrev_b32 v{vA}, 2, v{vLANE}
        v_lshlrev_b32 v{vA}, 3, v{vA}
        v_and_b32 v{vB}, 15, v{vLANE}
        v_lshlrev_b32 v{vC}, 1, v{vB}
        s_lshl_b32 s{sT2}, s{sR}, 5
        buffer_load_ushort v{XV}, v{vC}, s[{sX}:{sX+3}], s{sT2} offen
        s_mov_b32 s{sCNT}, 0
        L_r1:""")
        self.bound("L_r1x")
        a(f"""buffer_load_dwordx2 v[{ML}:{ML+1}], v{vA}, s[{sWS}:{sWS+3}], s{sT1} offen sc1
        buffer_load_dwordx2 v[{ML+2}:{ML+3}], v{vA}, s[{sWS}:{sWS+3}], s{sT1} offen offset:128 sc1
        buffer_load_dwordx4 v[{Y}:{Y+3}], v{vL16}, s[{sWS}:{sWS+3}], s{sT0} offen sc1
        buffer_load_dwordx4 v[{Y+4}:{Y+7}], v{vL16}, s[{sWS}:{sWS+3}], s{sT0} offen offset:1024 sc1
        s_waitcnt vmcnt(2)""")
        self.sentinel([ML, ML + 1, ML + 2, ML + 3], t)
        a(f"""s_cbranch_scc0 L_r1x
        s_waitcnt vmcnt(0)
        s_branch L_r1
        L_r1x:""")
        for u in range(2): a(f"v_max_f32_dpp v{t+u}, v{ML+2*u}, v{ML+2*u} row_ror:4 row_mask:0xf bank_mask:0xf")
        self.rowred("v_max_f32", [t, t + 1], (8,)); self.xrow("v_max_f32", [t, t + 1], [t + 2, t + 3], which=(16,))
        for u in range(2): a(f"v_sub_f32 v{t+u}, v{ML+2*u}, v{t+u}")
        for u in range(2): a(f"v_exp_f32 v{t+u}, v{t+u}")
        for u in range(2): a(f"v_mul_f32 v{t+2+u}, v{t+u}, v{ML+2*u+1}")
        self.rowred("v_add_f32", [t + 2, t + 3], (4, 8)); self.xrow("v_add_f32", [t + 2, t + 3], [t + 4, t + 5], which=(16,))
        for u in range(2): a(f"v_rcp_f32 v{t+2+u}, v{t+2+u}")
        for u in range(2): a(f"v_mul_f32 v{t+u}, v{t+u}, v{t+2+u}")
        a(f"""v_bfe_u32 v{COL}, v{vLANE}, 5, 1
        v_bfe_u32 v{t+4}, v{vLANE}, 4, 1
        v_lshl_add_u32 v{COL}, v{t+4}, 1, v{COL}
        v_and_b32 v{t+4}, 3, v{vLANE}
        v_lshl_add_u32 v{COL}, v{t+4}, 2, v{COL}
        s_lshl_b32 s{sT2}, s{sW}, 6
        v_lshl_add_u32 v{vD}, v{COL}, 2, s{sT2}
        v_lshlrev_b32 v{vB}, 2, v{vB}
        v_add_u32 v{vB}, {L_RP}, v{vB}""")
        self.hoff(HO, t + 4)
        a(f"""s_waitcnt vmcnt(0)
        L_r2:""")
        self.sentinel([Y + k for k in range(8)], t + 4)
        a("s_cbranch_scc0 L_r2x")
        self.bound("L_r2x")
        a(f"""buffer_load_dwordx4 v[{Y}:{Y+3}], v{vL16}, s[{sWS}:{sWS+3}], s{sT0} offen sc1
        buffer_load_dwordx4 v[{Y+4}:{Y+7}], v{vL16}, s[{sWS}:{sWS+3}], s{sT0} offen offset:1024 sc1
        s_waitcnt vmcnt(0)
        s_branch L_r2
        L_r2x:""")
        self.stamp(10)
        for r in range(4): a(f"v_mul_f32 v{Y+r}, v{Y+r}, v{t}")
        for r in range(4): a(f"v_fmac_f32 v{Y+r}, v{Y+4+r}, v{t+1}")
        self.redscat(Y)
        a(f"""ds_write_b32 v{vD}, v{Y} offset:{L_RP}
        s_lshl_b32 s{sT0}, s{sR}, 6
        s_add_u32 s{sT0}, s{sT0}, {WS_H}
        v_lshlrev_b32 v{XV}, 16, v{XV}
        s_waitcnt lgkmcnt(0)
        s_barrier
        s_cmp_lg_u32 s{sW}, 0
        s_cbranch_scc1 L_fin""")
        for k in range(4): a(f"ds_read2_b32 v[{Y+2*k}:{Y+2*k+1}], v{vB} offset0:{32*k} offset1:{32*k+16}")
        a("s_waitcnt lgkmcnt(0)")
        self.tree("v_add_f32", [Y + k for k in range(8)])
        self.rbf(Y, Y)
        a(f"v_add_f32 v{Y}, v{Y}, v{XV}")
        self.rbf(Y, Y)
        for k in range(4): a(f"v_mov_b32_dpp v{Y+4+k}, v{Y} quad_perm:[{k},{k},{k},{k}] row_mask:0xf bank_mask:0xf")
        a(f"buffer_store_dwordx4 v[{Y+4}:{Y+7}], v{HO}, s[{sWS}:{sWS+3}], s{sT0} offen sc1")
        self.stamp(11)
        Z = vV
        a(f"""v_lshlrev_b32 v{t}, 2, v{COL}
        ds_bpermute_b32 v{XV}, v{t}, v{Y}
        s_mul_i32 s{sT0}, s{sR}, {NG*64}
        s_add_u32 s{sT0}, s{sT0}, {WS_Z}
        v_mov_b32 v{t}, 0x10000000
        v_cmp_gt_u32 vcc, {NG*4-192}, v{vLANE}
        v_cndmask_b32 v{vA}, v{t}, v{vL16}, vcc
        v_lshlrev_b32 v{COL}, 1, v{COL}
        s_lshl_b32 s{sT2}, s{sR}, 5
        s_mov_b32 s{sCNT}, 0
        s_waitcnt lgkmcnt(0)
        L_f1:""")
        self.bound("L_f1x")
        for u in range(4):
            a(f"buffer_load_dwordx4 v[{Z+4*u}:{Z+4*u+3}], v{vL16 if u < 3 else vA}, s[{sWS}:{sWS+3}], s{sT0} offen offset:{1024*u} sc1")
        a("s_waitcnt vmcnt(0)")
        self.sentinel([Z + k for k in range(16)], t)
        a("s_cbranch_scc1 L_f1\nL_f1x:")
        self.stamp(13)
        for r in range(4): self.tree("v_add_f32", [Z + 4 * u + r for u in range(4)])
        self.redscat(Z)
        self.rbf(Z, Z)
        a(f"""v_add_f32 v{Z}, v{Z}, v{XV}
        v_cvt_pk_bf16_f32 v{Z}, v{Z}, v{Z}
        s_mov_b32 exec_lo, 0x000f000f
        s_mov_b32 exec_hi, 0x000f000f
        buffer_store_short v{Z}, v{COL}, s[{sOUT}:{sOUT+3}], s{sT2} offen""")

    def role_G(self):
        a, c = self.a, self.c
        W = vV
        DN = vK
        AD = vK + 32
        SEL = vK + 40
        t = vK + 48
        a(f"""v_lshrrev_b32 v{vA}, 4, v{vLANE}          ; g
        v_bfe_u32 v{vB}, v{vLANE}, 3, 1             ; set
        v_lshl_add_u32 v{vB}, v{vB}, 2, v{vA}       ; g + 4*set
        v_mul_u32_u24 v{vC}, {10*3456}, v{vB}
        v_and_b32 v{vD}, 3, v{vLANE}
        v_lshl_add_u32 v{vC}, v{vD}, 4, v{vC}
        s_mul_i32 s{sT0}, s{sW}, {80*3456}
        s_lshl_b32 s{sT1}, s{sG}, 6
        s_add_u32 s{sT0}, s{sT0}, s{sT1}
        s_add_u32 s{sT0}, s{sT0}, 3456
        v_add_u32 v{vC}, s{sT0}, v{vC}
        v_mov_b32 v{vD}, 0
        v_mov_b32 v{AD}, s16
        v_mov_b32 v{AD+1}, s17
        v_mov_b32 v{AD+2}, s18
        v_mov_b32 v{AD+3}, s19
        s_mov_b32 vcc_lo, 0xf0f0f0f0
        s_mov_b32 vcc_hi, 0xf0f0f0f0
        v_cndmask_b32 v{AD}, v{AD}, v{AD+2}, vcc
        v_cndmask_b32 v{AD+1}, v{AD+1}, v{AD+3}, vcc
        s_mov_b32 s{sT2}, {3*3456}
        s_mov_b32 s{sT3}, 0
        v_lshl_add_u64 v[{AD}:{AD+1}], v[{vC}:{vD}], 0, v[{AD}:{AD+1}]""")
        for k in range(1, 4): a(f"v_lshl_add_u64 v[{AD+2*k}:{AD+2*k+1}], v[{AD+2*k-2}:{AD+2*k-1}], 0, s[{sT2}:{sT3}]")
        for tt in range(10):
            self.vm(f"global_load_dwordx4 v[{W+4*tt}:{W+4*tt+3}], v[{AD+2*(tt//3)}:{AD+2*(tt//3)+1}], off offset:{(tt%3-1)*3456} {c['ffpol']}", f"W{tt}")
        a(f"""v_mul_u32_u24 v{vC}, 10240, v{vA}
        v_and_b32 v{vD}, 15, v{vLANE}
        v_lshl_add_u32 v{vC}, v{vD}, 4, v{vC}
        s_mul_i32 s{sT0}, s{sG}, 40960
        s_lshl_b32 s{sT1}, s{sW}, 8
        s_add_u32 s{sT0}, s{sT0}, s{sT1}
        s_add_u32 s{sT1}, s{sT0}, 5120
        s_cmp_ge_u32 s{sW}, 5
        s_cbranch_scc1 L_g0""")
        for tt in range(8):
            a(f"buffer_load_dwordx4 v[{DN+4*tt}:{DN+4*tt+3}], v{vC}, s[{sDN}:{sDN+3}], s{sT0 if tt < 4 else sT1} offen offset:{(tt&3)*1280} {c['ffpol']}")
        a("L_g0:")
        a(f"v_mov_b32 v{t}, 0x0c0c0c0c\ns_mov_b32 s{sT0}, 0x01000100\ns_mov_b32 s{sT1}, 0x03020302")
        for par in range(2):
            for w in range(4): a(f"v_bfi_b32 v{SEL+4*par+w}, v{vM+w}, s{sT0+par}, v{t}")
        a(f"""v_mul_u32_u24 v{vB}, 20, v{vB}
        s_mul_i32 s{sT0}, s{sW}, 160
        v_add_u32 v{vB}, s{sT0}, v{vB}
        v_lshrrev_b32 v{vC}, 5, v{vLANE}
        s_lshl_b32 s{sT0}, s{sW}, 1
        v_add_u32 v{vC}, s{sT0}, v{vC}
        v_lshlrev_b32 v{vC}, 8, v{vC}
        v_and_b32 v{vE}, 7, v{vLANE}
        v_lshl_add_u32 v{vC}, v{vE}, 5, v{vC}
        v_bfe_u32 v{vF}, v{vLANE}, 4, 1
        v_lshl_add_u32 v{vC}, v{vF}, 4, v{vC}
        v_bfe_u32 v{vF}, v{vLANE}, 3, 1
        v_lshl_add_u32 v{vE}, v{vF}, 5, v{vE}
        v_lshl_add_u32 v{vE}, v{vA}, 3, v{vE}
        v_lshlrev_b32 v{vE}, 2, v{vE}
        v_add_u32 v{vE}, {L_GP}, v{vE}
        v_lshrrev_b32 v{vF}, 1, v{vD}
        s_lshl_b32 s{sT0}, s{sW}, 3
        v_add_u32 v{vF}, s{sT0}, v{vF}
        v_mul_u32_u24 v{vF}, {NG*64}, v{vF}
        v_and_b32 v{vD}, 1, v{vLANE}
        v_lshl_add_u32 v{vF}, v{vD}, 5, v{vF}
        v_lshl_add_u32 v{vF}, v{vA}, 4, v{vF}
        s_cmp_lg_u32 s{sW}, 7
        s_cbranch_scc1 L_g1""")
        H = vWO
        a(f"""s_and_b32 s{sT0}, s{sG}, {c['nrep']-1}
        s_lshl_b32 s{sT0}, s{sT0}, 12
        s_add_u32 s{sT0}, s{sT0}, {WS_H}
        v_lshlrev_b32 v{vD}, 3, v{vLANE}
        v_lshlrev_b32 v{vA}, 2, v{vLANE}
        s_mov_b32 s{sCNT}, 0
        L_g2:""")
        self.bound("L_g2x")
        a(f"""buffer_load_dwordx4 v[{H}:{H+3}], v{vL16}, s[{sWS}:{sWS+3}], s{sT0} offen sc1
        buffer_load_dwordx4 v[{H+4}:{H+7}], v{vL16}, s[{sWS}:{sWS+3}], s{sT0} offen offset:1024 sc1
        buffer_load_dwordx2 v[{H+8}:{H+9}], v{vD}, s[{sWS}:{sWS+3}], s{sT0} offen offset:2048 sc1
        s_waitcnt vmcnt(0)""")
        self.sentinel([H + k for k in range(10)], t)
        a("s_cbranch_scc1 L_g2\nL_g2x:")
        self.stamp(10)
        mb, rs = self.ln_stats([H + k for k in range(10)], t, t + 1, t + 2)
        for k in range(10): a(f"v_sub_f32 v{H+k}, v{H+k}, v{mb}")
        for k in range(5): a(f"v_cvt_pk_bf16_f32 v{t+4+k}, v{H+2*k}, v{H+2*k+1}")
        for k in range(5): a(f"v_lshlrev_b32 v{H+2*k}, 16, v{t+4+k}\nv_and_b32 v{H+2*k+1}, s{sHIM}, v{t+4+k}")
        for k in range(10): a(f"v_mul_f32 v{H+k}, v{H+k}, v{rs}")
        for k in range(5): a(f"v_cvt_pk_bf16_f32 v{t+4+k}, v{H+2*k}, v{H+2*k+1}")
        a(f"""ds_write_b64 v{vD}, v[{t+4}:{t+5}] offset:{L_XN}
        ds_write_b64 v{vD}, v[{t+6}:{t+7}] offset:{L_XN+512}
        ds_write_b32 v{vA}, v{t+8} offset:{L_XN+1024}
        s_waitcnt lgkmcnt(0)
        L_g1:
        s_barrier""")
        self.stamp(11)
        P = t; A0 = vS; GA = vS + 8
        a(f"""v_add_u32 v{vB}, {L_XN}, v{vB}
        ds_read2_b32 v[{P}:{P+1}], v{vB} offset0:0 offset1:1
        ds_read2_b32 v[{P+2}:{P+3}], v{vB} offset0:2 offset1:3
        ds_read_b32 v{P+4}, v{vB} offset:16
        s_waitcnt vmcnt(8) lgkmcnt(0)""")
        a(f"s_cmp_lt_u32 s{sW}, 5\ns_cbranch_scc1 L_g3\ns_waitcnt vmcnt(0)\nL_g3:")
        for tt in range(10):
            Ax = A0 + 4 * (tt & 1)
            for w in range(4): a(f"v_perm_b32 v{Ax+w}, v{P+tt//2}, v{P+tt//2}, v{SEL+4*(tt&1)+w}")
            a(f"v_mfma_f32_16x16x32_bf16 v[{GA}:{GA+3}], v[{Ax}:{Ax+3}], v[{W+4*tt}:{W+4*tt+3}], {'0' if tt == 0 else f'v[{GA}:{GA+3}]'}")
        a(f"""s_mov_b32 exec_lo, 0x00ff00ff
        s_mov_b32 exec_hi, 0xff00ff00
        ds_write_b128 v{vC}, v[{GA}:{GA+3}] offset:{L_GP}
        s_mov_b64 exec, -1
        s_waitcnt lgkmcnt(0)
        s_barrier
        s_cmp_ge_u32 s{sW}, 5
        s_cbranch_scc1 L_fin""")
        self.stamp(12)
        R = vQ
        for k in range(8): a(f"ds_read2st64_b32 v[{R+2*k}:{R+2*k+1}], v{vE} offset0:{2*k} offset1:{2*k+1}")
        a(f"""s_lshl_b32 s{sT0}, s{sG}, 6
        s_add_u32 s{sT0}, s{sT0}, {WS_Z}
        s_mov_b32 s{sT1}, {hex(f2u(0.044715))}
        s_mov_b32 s{sT2}, {hex(f2u(-2 * 0.7978845608028654 * 1.4426950408889634))}
        s_waitcnt lgkmcnt(0)""")
        self.tree("v_add_f32", [R + k for k in range(16)])
        self.rbf(R, R)
        a(f"""v_mul_f32 v{R+1}, v{R}, v{R}
        v_mov_b32_dpp v{R+3}, v{R} row_ror:8 row_mask:0xf bank_mask:0xf
        v_mul_f32 v{R+1}, v{R+1}, v{R}
        v_fma_f32 v{R+1}, v{R+1}, s{sT1}, v{R}
        v_mul_f32 v{R+1}, s{sT2}, v{R+1}
        v_exp_f32 v{R+1}, v{R+1}
        v_add_f32 v{R+1}, 1.0, v{R+1}
        v_rcp_f32 v{R+1}, v{R+1}
        v_mul_f32 v{R+1}, v{R+1}, v{R}""")
        self.rbf(R + 1, R + 1)
        a(f"""v_mul_f32 v{R+1}, v{R+1}, v{R+3}
        v_cvt_pk_bf16_f32 v{R+1}, v{R+1}, v{R+1}
        s_waitcnt vmcnt(0)""")
        for tt in range(8):
            Ax = A0 + 4 * (tt & 1)
            for w in range(4): a(f"v_and_b32_dpp v{Ax+w}, v{R+1}, v{vM+w} row_newbcast:{tt} row_mask:0xf bank_mask:0xf")
            a(f"v_mfma_f32_16x16x32_bf16 v[{GA}:{GA+3}], v[{Ax}:{Ax+3}], v[{DN+4*tt}:{DN+4*tt+3}], {'0' if tt == 0 else f'v[{GA}:{GA+3}]'}")
        a(f"""s_mov_b64 exec, s[{sLO32}:{sLO32+1}]
        buffer_store_dwordx4 v[{GA}:{GA+3}], v{vF}, s[{sWS}:{sWS+3}], s{sT0} offen sc1""")
        self.stamp(13)

def gen(**c):
    g = Gen(**c)
    body = g.build()
    body, n = hazard.fix(body)
    return wrap(body, 256, 512, L_END, 256), n

if __name__ == "__main__":
    import json
    name = sys.argv[1]
    cfg = json.loads(sys.argv[2]) if len(sys.argv) > 2 else {}
    s, n = gen(**cfg)
    open(name, "w").write(s)
    print(name, "nops", n, "lines", s.count("\n"))
```
